```python
import torch

def _softmax(x, axis=-1):
    return torch.softmax(x, dim=axis)
def _gelu(x):
    return torch.nn.functional.gelu(x, approximate="tanh")
def _silu(x):
    return torch.nn.functional.silu(x)
def _sigmoid(x):
    return torch.sigmoid(x)
def _layernorm(x, axis=-1, eps=1e-5):
    m = x.mean(dim=axis, keepdim=True)
    v = x.var(dim=axis, keepdim=True, unbiased=False)
    return (x - m) / torch.sqrt(v + eps)
def _scatter_add(tgt, idx, src, axis=0):
    return tgt.clone().index_add_(axis, idx, src)
def _segment_sum(src, seg, n):
    out = torch.zeros((n,) + src.shape[1:], dtype=src.dtype)
    return out.index_add_(0, seg, src)
def _pad(x, pw):
    flat = tuple(v for pair in reversed(pw) for v in pair)
    return torch.nn.functional.pad(x, flat)

kernel_name = 'concat_heads__mha_block_cached__gqa_block_cached__near_ridge'

def setup_inputs():

    _w = (lambda a: (lambda t: t.to(torch.bfloat16) if t.is_floating_point() else t)(torch.as_tensor(a)))
    def _A_setup():
        B, Sq, D = 8, 160, 1024
        H, Sk, Dh = 32, 1024, 128
        return {
            "x": _w((lambda *s: torch.randn(*s, dtype=torch.bfloat16) * 0.8)(B, Sq, D)),
            "k_cache": _w((lambda *s: torch.randn(*s, dtype=torch.bfloat16) * 0.8)(B, H, Sk, Dh)),
            "v_cache": _w((lambda *s: torch.randn(*s, dtype=torch.bfloat16) * 0.05)(B, H, Sk, Dh)),
            "wq": _w((lambda *s: torch.randn(*s, dtype=torch.bfloat16) * 0.8)(D, H * Dh) * (D ** -0.5)),
            "wo": _w((lambda *s: torch.randn(*s, dtype=torch.bfloat16) * 0.05)(H * Dh, D) * ((H * Dh) ** -0.5)),
        }
    _A_in = _A_setup()

    def _B_setup():
        B, Sq, D = 8, 160, 1024
        Hq, Hkv, Sk, Dh = 32, 32, 1024, 128
        assert Hq % Hkv == 0, (Hq, Hkv)
        return {
            "x": _w((lambda *s: torch.randn(*s, dtype=torch.bfloat16) * 0.8)(B, Sq, D)),
            "k_cache": _w((lambda *s: torch.randn(*s, dtype=torch.bfloat16) * 0.8)(B, Hkv, Sk, Dh)),
            "v_cache": _w((lambda *s: torch.randn(*s, dtype=torch.bfloat16) * 0.05)(B, Hkv, Sk, Dh)),
            "wq": _w((lambda *s: torch.randn(*s, dtype=torch.bfloat16) * 0.8)(D, Hq * Dh) * (D ** -0.5)),
            "wo": _w((lambda *s: torch.randn(*s, dtype=torch.bfloat16) * 0.05)(Hq * Dh, D) * ((Hq * Dh) ** -0.5)),
        }
    _B_in = _B_setup()

    return {
        "A_x": _A_in["x"],
        "A_k_cache": _A_in["k_cache"],
        "A_v_cache": _A_in["v_cache"],
        "A_wq": _A_in["wq"],
        "A_wo": _A_in["wo"],
        "B_x": _B_in["x"],
        "B_k_cache": _B_in["k_cache"],
        "B_v_cache": _B_in["v_cache"],
        "B_wq": _B_in["wq"],
        "B_wo": _B_in["wo"],
    }

def reference(A_x, A_k_cache, A_v_cache, A_wq, A_wo, B_x, B_k_cache, B_v_cache, B_wq, B_wo):
    def _A_ref(x, k_cache, v_cache, wq, wo):
        B, Sq, D = x.shape
        H, Dh = 32, 128
        q = (lambda x, *d: x.permute(*d))((x @ wq).reshape(B, Sq, H, Dh), 0, 2, 1, 3)
        scores = torch.einsum("bhqd,bhkd->bhqk", q, k_cache) * (Dh ** -0.5)
        p = _softmax(scores, axis=-1)
        o = torch.einsum("bhqk,bhkd->bhqd", p, v_cache)
        return (lambda x, *d: x.permute(*d))(o, 0, 2, 1, 3).reshape(B, Sq, H * Dh) @ wo

    def _B_ref(x, k_cache, v_cache, wq, wo):
        B, Sq, D = x.shape
        Hq, Dh = 32, 128
        Hkv = k_cache.shape[1]
        rep = Hq // Hkv
        q = (lambda x, *d: x.permute(*d))((x @ wq).reshape(B, Sq, Hq, Dh), 0, 2, 1, 3)
        k = (lambda x, n, axis: torch.repeat_interleave(x, n, dim=axis))(k_cache, rep, axis=1)
        v = (lambda x, n, axis: torch.repeat_interleave(x, n, dim=axis))(v_cache, rep, axis=1)
        scores = torch.einsum("bhqd,bhkd->bhqk", q, k) * (Dh ** -0.5)
        p = _softmax(scores, axis=-1)
        o = torch.einsum("bhqk,bhkd->bhqd", p, v)
        return (lambda x, *d: x.permute(*d))(o, 0, 2, 1, 3).reshape(B, Sq, Hq * Dh) @ wo

    a = _A_ref(A_x, A_k_cache, A_v_cache, A_wq, A_wo)
    b = _B_ref(B_x, B_k_cache, B_v_cache, B_wq, B_wo)
    return torch.concatenate([a, b], axis=-1)
```

```python
import re
def vr(base, n=1, f='v'):
    return f"{f}{base}" if n == 1 else f"{f}[{base}:{base+n-1}]"
def ar(base, n=1): return vr(base, n, 'a')
def sr(base, n=1): return vr(base, n, 's')

_reg = re.compile(r'^(-|abs\()?([vas])(\d+|\[(\d+):(\d+)\])\)?$')
def regs(tok):
    tok = tok.strip()
    if tok in ('vcc',): return {('s', 106), ('s', 107)}
    if tok == 'exec': return {('s', 126), ('s', 127)}
    if tok == 'm0': return {('s', 124)}
    m = _reg.match(tok)
    if not m: return set()
    f = m.group(2)
    if m.group(4) is not None: return {(f, i) for i in range(int(m.group(4)), int(m.group(5)) + 1)}
    return {(f, int(m.group(3)))}

TRANS = ('v_exp_f32', 'v_log_f32', 'v_rcp_f32', 'v_rsq_f32', 'v_sqrt_f32', 'v_sin_f32', 'v_cos_f32')
def parse(line):
    s = line.split(';')[0].strip()
    if not s or s.endswith(':') or s.startswith('.'): return None
    p = s.split(None, 1); op = p[0]
    ops = []
    if len(p) > 1:
        ops = [x.strip() for x in re.split(r',(?![^\[]*\])', p[1])]
        last = ops[-1].split();
        mods = last[1:] if last else []
        ops[-1] = last[0] if last else ''
    else: mods = []
    d = dict(op=op, ops=ops, mods=mods, line=line, w=set(), r=set(), kind='other')
    R = lambda i: regs(ops[i]) if i < len(ops) else set()
    if op.startswith('v_mfma'):
        d['kind'] = 'mfma'; d['w'] = R(0); d['ab'] = R(1) | R(2); d['c'] = R(3); d['r'] = d['ab'] | d['c']
        d['passes'] = 4 if '16x16x32' in op else 8
    elif op.startswith('v_'):
        d['kind'] = 'valu'
        if op.startswith('v_cmp'):
            d['w'] = R(0); d['r'] = set().union(*[R(i) for i in range(1, len(ops))])
        elif 'permlane' in op and 'swap' in op:
            d['w'] = R(0) | R(1); d['r'] = R(0) | R(1)
        else:
            d['w'] = R(0); d['r'] = set().union(set(), *[R(i) for i in range(1, len(ops))])
            if op.startswith('v_fmac') or op.startswith('v_dot2c'): d['r'] |= R(0)
            if '_co_' in op: d['w'] |= R(1)
    elif op.startswith('ds_read'):
        d['kind'] = 'ds'; d['w'] = R(0); d['r'] = R(1)
    elif op.startswith('ds_'):
        d['kind'] = 'ds'; d['r'] = set().union(set(), *[R(i) for i in range(len(ops))])
        if 'permute' in op or 'swizzle' in op or '_rtn' in op: d['w'] = R(0); d['r'] = set().union(set(), *[R(i) for i in range(1, len(ops))])
    elif op.startswith('buffer_load') or op.startswith('global_load'):
        d['kind'] = 'vmem'
        if 'lds' in mods or '_lds_' in op:
            d['r'] = set().union(set(), *[R(i) for i in range(len(ops))]) | {('s', 124)}; d['dma'] = True
        else:
            d['w'] = R(0); d['r'] = set().union(set(), *[R(i) for i in range(1, len(ops))])
    elif op.startswith('buffer_') or op.startswith('global_'):
        d['kind'] = 'vmem'; d['r'] = set().union(set(), *[R(i) for i in range(len(ops))])
        if 'store_dwordx4' in op or 'store_dwordx3' in op:
            d['wide'] = R(0) if op.startswith('buffer') else R(1)
    elif op.startswith('s_'):
        d['kind'] = 'salu'
        if op == 's_nop': d['nop'] = int(ops[0], 0) + 1
        elif op.startswith('s_cmp') or op.startswith('s_cbranch') or op in ('s_branch', 's_barrier', 's_waitcnt', 's_endpgm', 's_setprio', 's_sleep'):
            d['r'] = set().union(set(), *[R(i) for i in range(len(ops))])
        else:
            d['w'] = R(0); d['r'] = set().union(set(), *[R(i) for i in range(1, len(ops))])
    return d

def check_hazards(lines, tag=""):
    ins = [x for x in (parse(l) for l in lines) if x]
    probs = []
    n = len(ins)
    for i, p in enumerate(ins):
        dist = 0
        for j in range(i + 1, min(n, i + 24)):
            c = ins[j]
            need = 0; why = ''
            vw = {x for x in p['w'] if x[0] in 'va'}
            sw = {x for x in p['w'] if x[0] == 's'}
            if p['kind'] == 'mfma':
                ps = p['passes']; big = {4: 8, 8: 12}[ps]
                if c['kind'] == 'mfma':
                    if p['w'] & c['ab']: need, why = big, 'mfma D->AB'
                    elif p['w'] & c['c'] and not (p['w'] == c['c'] and c['passes'] == ps): need, why = {4: 6, 8: 10}[ps], 'mfma D->C partial'
                    elif p['w'] & c['w'] and not (p['w'] == c['c']): need, why = {4: 6, 8: 10}[ps], 'mfma D->D waw (conservative)'
                elif c['kind'] in ('valu', 'ds', 'vmem'):
                    if p['w'] & (c['r'] | c['w']): need, why = big, 'mfma D->use'
                    elif c['kind'] == 'valu' and p['c'] & c['w']: need, why = {4: 3, 8: 7}[ps], 'mfma C WAR'
            elif p['kind'] == 'valu':
                if c['kind'] == 'mfma' and vw & c['r']: need, why = 2, 'valu->mfma'
                elif c['kind'] == 'valu':
                    if p['op'].startswith(TRANS) and not c['op'].startswith(TRANS) and vw & c['r']: need, why = 1, 'trans->valu'
                    if 'permlane' in c['op'] and vw & c['r']: need, why = 2, 'valu->permlane'
                    if ('readlane' in c['op'] or 'readfirstlane' in c['op']) and vw & c['r']: need, why = max(need, 1), 'valu->readlane'
                    if sw & c['r']: need, why = max(need, 2), 'valu sgpr->valu'
                    if 'dpp' in c['line'] and vw & c['r']: need, why = 2, 'valu->dpp'
                    if c['op'].startswith('v_cndmask') and ('s', 106) in sw and 'vcc' in c['line']: need, why = 2, 'vcc->cndmask'
                elif c['kind'] == 'vmem' and sw & c['r']: need, why = 5, 'valu sgpr->vmem'
            elif p['kind'] == 'salu':
                if ('s', 124) in p['w'] and c.get('dma'): need, why = 1, 'm0->dma'
            elif p['kind'] == 'vmem' and 'wide' in p:
                if p['wide'] & c['w']: need, why = (2 if c['kind'] == 'valu' else 1), 'wide store WAR'
            if need > dist:
                probs.append(f"{tag} HAZARD {why}: need {need} have {dist}\n    {p['line'].strip()}\n    {c['line'].strip()}")
            dist += c.get('nop', 1)
            if dist >= 20: break
    return probs

def interleave(mf, fill):
    out = list(fill.get(-1, []))
    for i, m in enumerate(mf):
        out.append(m); out += fill.get(i, [])
    return out

def spread(groups, n, lo=0, hi=None, fill=None):
    if fill is None: fill = {}
    if hi is None: hi = n
    k = len(groups)
    for i, gp in enumerate(groups):
        pos = lo + (i * (hi - lo)) // max(k, 1)
        fill.setdefault(pos, []).extend(gp if isinstance(gp, list) else [gp])
    return fill
```

```python
NAME = "concat_heads__mha_block_cached__gqa_block_cached__near_ridge"
STAMP_OFF = 300000000 - (300000000 % 4096)

def header(launches):
    L = []
    for (k, g, b, lds) in launches:
        if k is None: L.append(f"; @launch grid=({g},1,1) block=({b},1,1) lds={lds}")
        else: L.append(f"; @launch kernel={k} grid=({g},1,1) block=({b},1,1) lds={lds}")
    L.append('.amdgcn_target "amdgcn-amd-amdhsa--gfx950"')
    L.append(".text")
    return L

def kbegin(label):
    return [f".globl {label}", ".p2align 8", f".type {label},@function", f"{label}:"]

def kdesc(label, vgpr, accum, sgpr=100):
    return ['.section .rodata,"a"', ".p2align 6", f".amdhsa_kernel {label}",
            f"  .amdhsa_next_free_vgpr {vgpr}", f"  .amdhsa_next_free_sgpr {sgpr}", f"  .amdhsa_accum_offset {accum}",
            "  .amdhsa_group_segment_fixed_size 0", "  .amdhsa_kernarg_size 104", "  .amdhsa_user_sgpr_count 2",
            "  .amdhsa_user_sgpr_kernarg_segment_ptr 1", "  .amdhsa_system_sgpr_workgroup_id_x 1", ".end_amdhsa_kernel", ".text"]

def stamp_start():
    return ["s_memrealtime s[88:89]", "s_memtime s[90:91]"]

def stamp_end(kidx=0, wgreg="s2", v0="v0", va=8):
    L = ["s_waitcnt vmcnt(0) lgkmcnt(0)", "s_memrealtime s[92:93]", "s_memtime s[94:95]",
         "s_load_dwordx2 s[84:85], s[0:1], 96",
         "s_getreg_b32 s86, hwreg(HW_REG_HW_ID)", "s_getreg_b32 s87, hwreg(HW_REG_XCC_ID)",
         "s_waitcnt lgkmcnt(0)",
         f"s_add_u32 s96, s84, {STAMP_OFF + kidx*65536}", "s_addc_u32 s97, s85, 0", "s_mov_b32 s98, 0x10000", "s_mov_b32 s99, 0x20000"]
    for i in range(8): L.append(f"v_mov_b32 v{va+i}, s{88+i}")
    L += [f"v_mov_b32 v{va+8}, s86", f"v_mov_b32 v{va+9}, s87", f"v_mov_b32 v{va+10}, 0", f"v_mov_b32 v{va+11}, 0",
          f"s_lshl_b32 s84, {wgreg}, 6", f"v_mov_b32 v{va+12}, s84",
          f"v_cmp_eq_u32 vcc, 0, {v0}", "s_and_saveexec_b64 s[84:85], vcc", "s_cbranch_execz L_stamp_skip%d" % kidx,
          f"buffer_store_dwordx4 v[{va}:{va+3}], v{va+12}, s[96:99], 0 offen",
          f"buffer_store_dwordx4 v[{va+4}:{va+7}], v{va+12}, s[96:99], 0 offen offset:16",
          f"buffer_store_dwordx4 v[{va+8}:{va+11}], v{va+12}, s[96:99], 0 offen offset:32",
          "L_stamp_skip%d:" % kidx, "s_mov_b64 exec, s[84:85]"]
    return L
```

```python
import sys, math, struct
from common import *
from asmlib import *

K1 = "attn_fused_kernel"
K2 = "outproj_kernel"
QSCALE = struct.unpack('<I', struct.pack('<f', math.log2(math.e) / math.sqrt(128.0)))[0]

class Cfg:
    stamps = True
    ntKV = True
    ntX = True; ntW = True; ntWo = True; ntO = False
    oStore = ""
    D = 2
    kv_pf_step = 29
    dumpq = False
    skip_attn = False
    mid_stamp = False

def load_ptrs(A):
    A("s_load_dwordx16 s[32:47], s[0:1], 0")
    A("s_load_dwordx4 s[48:51], s[0:1], 64")
    A("s_load_dwordx2 s[52:53], s[0:1], 80")
    A("s_load_dwordx2 s[54:55], s[0:1], 96")

def sel_ptr(A, dst, idx):
    A(f"s_cselect_b32 s{dst}, s{32+2*(idx+5)}, s{32+2*idx}")
    A(f"s_cselect_b32 s{dst+1}, s{33+2*(idx+5)}, s{33+2*idx}")

def gen_k1(c):
    L = kbegin(K1); A = L.append
    nt = lambda b: " nt" if b else ""
    vX = [4, 5]; vW = list(range(6, 14)); vXd = list(range(14, 19)); vWd = list(range(19, 23))
    vK = [list(range(23, 27)), list(range(27, 31))]; vV = [list(range(31, 39)), list(range(39, 47))]
    vKVd = list(range(47, 51)); vO = 51
    T = [52, 53, 54, 55, 1, 2, 3]
    XF = [56, 76]
    WF = [192, 224]
    ACC = 96
    QF = 96
    KF = [176, 208]
    VF = [192, 224]
    SB = [56, 64, 72, 80]
    ONES = 88
    NEGM = 240
    OA = 0; LA = 160
    STG = 65536; XS = 114688
    A("s_cmp_ge_u32 s2, 256"); A("s_cbranch_scc1 L_k1_end")
    if c.stamps: L += stamp_start()
    load_ptrs(A)
    A("v_lshrrev_b32 v1, 6, v0")
    A("v_and_b32 v2, 63, v0")
    A("v_readfirstlane_b32 s20, v1")
    A("s_and_b32 s23, s2, 7"); A("s_lshr_b32 s24, s2, 3")
    A("s_lshr_b32 s25, s23, 2")
    A("s_and_b32 s26, s23, 3"); A("s_lshl_b32 s26, s26, 2"); A("s_and_b32 s27, s24, 3"); A("s_add_u32 s26, s26, s27")
    A("s_lshr_b32 s27, s24, 2")
    A("s_lshr_b32 s21, s20, 1")
    A("s_and_b32 s22, s20, 1")
    A("v_and_b32 v52, 15, v2"); A("v_lshrrev_b32 v53, 4, v2"); A("v_lshrrev_b32 v54, 2, v52"); A("v_and_b32 v55, 3, v2")
    for j in range(5):
        A(f"s_mul_i32 s28, s20, 40"); A(f"s_add_u32 s28, s28, {8*j}")
        A("v_lshrrev_b32 v1, 3, v2"); A("v_add_u32 v1, s28, v1")
        A("v_lshrrev_b32 v3, 1, v1"); A("v_xor_b32 v3, v3, v2"); A("v_and_b32 v3, 7, v3"); A("v_lshlrev_b32 v3, 4, v3")
        A(f"v_lshl_add_u32 v{vXd[j]}, v1, 11, v3")
        if j & 3: A(f"v_subrev_u32 v{vXd[j]}, {1024*(j&3)}, v{vXd[j]}")
    for j in range(4):
        A(f"s_lshl_b32 s28, s20, 3"); A(f"s_add_u32 s28, s28, {2*j}")
        A("v_lshrrev_b32 v1, 5, v2"); A("v_add_u32 v1, s28, v1")
        A("v_and_b32 v3, 3, v1"); A("s_lshl_b32 s28, s22, 2"); A("v_or_b32 v3, s28, v3")
        A("v_lshlrev_b32 v3, 1, v3"); A("v_xor_b32 v3, v3, v2"); A("v_and_b32 v3, 31, v3"); A("v_lshlrev_b32 v3, 4, v3")
        A(f"v_lshl_add_u32 v{vWd[j]}, v1, 13, v3")
        if j: A(f"v_subrev_u32 v{vWd[j]}, {1024*j}, v{vWd[j]}")
    A("s_waitcnt lgkmcnt(0)")
    A("s_cmp_eq_u32 s25, 1")
    sel_ptr(A, 4, 0); sel_ptr(A, 8, 3); sel_ptr(A, 56, 1); sel_ptr(A, 58, 2)
    A(f"s_mul_i32 s28, s27, {160*2048}"); A("s_add_u32 s4, s4, s28"); A("s_addc_u32 s5, s5, 0")
    A(f"s_mov_b32 s6, {160*2048}"); A("s_mov_b32 s7, 0x20000")
    A("s_lshl_b32 s28, s26, 9"); A("s_add_u32 s8, s8, s28"); A("s_addc_u32 s9, s9, 0")
    A(f"s_sub_u32 s10, {1024*8192}, s28"); A("s_mov_b32 s11, 0x20000")
    A(f"s_mul_i32 s60, s20, 5120"); A(f"s_add_u32 s60, s60, {XS}")
    A(f"s_lshl_b32 s61, s20, 12"); A(f"s_add_u32 s61, s61, {STG}")
    A("s_lshl_b32 s62, s20, 13")
    def dmaX(t):
        g = [[f"s_add_u32 m0, s60, {(t%2)*20480}", f"s_movk_i32 s29, {t*128}",
              f"buffer_load_dwordx4 v{vXd[0]}, s[4:7], s29 offen{nt(c.ntX)} lds"]]
        for j in range(1, 4): g.append([f"buffer_load_dwordx4 v{vXd[j]}, s[4:7], s29 offen offset:{1024*j}{nt(c.ntX)} lds"])
        g.append([f"s_add_u32 m0, s60, {(t%2)*20480+4096}", "s_nop 0", f"buffer_load_dwordx4 v{vXd[4]}, s[4:7], s29 offen{nt(c.ntX)} lds"])
        return g
    def dmaW(s):
        g = [[f"s_add_u32 m0, s61, {(s%3)*16384}", f"s_mov_b32 s30, {s*262144}",
              f"buffer_load_dwordx4 v{vWd[0]}, s[8:11], s30 offen{nt(c.ntW)} lds"]]
        for j in range(1, 4): g.append([f"buffer_load_dwordx4 v{vWd[j]}, s[8:11], s30 offen offset:{1024*j}{nt(c.ntW)} lds"])
        return g
    def flat(gs): return [x for g in gs for x in g]
    issued = []
    def vm_after(tags):
        last = max([i for i, t in enumerate(issued) if t in tags], default=-1)
        return min(63, len(issued) - 1 - last)
    L += flat(dmaX(0)); L += flat(dmaW(0)); L += flat(dmaW(1)); L += flat(dmaX(1)); L += flat(dmaW(2))
    issued += ['X0']*5 + ['W0']*4 + ['W1']*4 + ['X1']*5 + ['W2']*4
    A("s_cmp_eq_u32 s22, 1"); A("s_cselect_b32 s12, s58, s56"); A("s_cselect_b32 s13, s59, s57")
    A("s_lshl_b32 s28, s26, 1"); A("s_add_u32 s63, s28, s21")
    A("s_lshl_b32 s28, s27, 5"); A("s_add_u32 s28, s28, s63"); A("s_lshl_b32 s28, s28, 18")
    A("s_add_u32 s12, s12, s28"); A("s_addc_u32 s13, s13, 0"); A("s_mov_b32 s14, 0x40000"); A("s_mov_b32 s15, 0x20000")
    A("s_lshl_b32 s28, s25, 3"); A("s_add_u32 s28, s28, s27"); A("s_mul_i32 s28, s28, 10"); A("s_mul_i32 s29, s22, 5"); A("s_add_u32 s28, s28, s29")
    A("s_lshl_b32 s28, s28, 17"); A("s_lshl_b32 s29, s63, 12"); A("s_add_u32 s28, s28, s29")
    A("s_add_u32 s16, s54, s28"); A("s_addc_u32 s17, s55, 0"); A(f"s_mov_b32 s18, {4*131072+4096}"); A("s_mov_b32 s19, 0x20000")
    A(f"v_lshlrev_b32 v{vO}, 4, v2")
    for kk in range(2):
        A("s_mul_i32 s28, s22, 80"); A("v_add_u32 v1, s28, v52"); A("v_lshlrev_b32 v1, 7, v1")
        A("v_lshrrev_b32 v3, 1, v52"); A(f"v_xor_b32 v3, {4*kk}, v3"); A("v_xor_b32 v3, v3, v53"); A("v_lshlrev_b32 v3, 4, v3")
        A(f"v_add_u32 v1, {XS}, v1"); A(f"v_add_u32 v{vX[kk]}, v1, v3")
    A("v_and_b32 v1, 1, v53"); A("v_lshl_or_b32 v1, v1, 2, v54")
    A("v_lshl_add_u32 v3, v53, 3, v54"); A("v_lshlrev_b32 v3, 9, v3"); A("v_lshl_add_u32 v3, v55, 3, v3")
    A(f"s_lshl_b32 s28, s21, 8"); A(f"s_add_u32 s28, s28, {STG}"); A("v_add_u32 v3, s28, v3")
    for dt in range(8):
        A(f"v_xor_b32 v{vW[dt]}, {dt}, v1"); A(f"v_lshl_add_u32 v{vW[dt]}, v{vW[dt]}, 5, v3")
    A("v_lshl_add_u32 v3, v53, 2, v54"); A("v_lshlrev_b32 v3, 8, v3"); A("v_lshl_add_u32 v3, v55, 3, v3")
    A("s_lshl_b32 s28, s21, 14"); A("s_add_u32 s29, s28, 8192"); A("v_add_u32 v3, s29, v3")
    for dt in range(8):
        A(f"v_xor_b32 v{vV[0][dt]}, {dt}, v1"); A(f"v_lshl_add_u32 v{vV[0][dt]}, v{vV[0][dt]}, 5, v3")
        A(f"v_add_u32 v{vV[1][dt]}, 0x10000, v{vV[0][dt]}")
    A("v_lshrrev_b32 v1, 1, v53"); A("v_and_b32 v3, 1, v53"); A("v_lshl_or_b32 v1, v3, 1, v1"); A("v_xor_b32 v1, v1, v52")
    A("v_lshlrev_b32 v3, 8, v52"); A("v_add_u32 v3, s28, v3")
    for s in range(4):
        A(f"v_xor_b32 v{vK[0][s]}, {4*s}, v1"); A(f"v_lshl_add_u32 v{vK[0][s]}, v{vK[0][s]}, 4, v3")
        A(f"v_add_u32 v{vK[1][s]}, 0x10000, v{vK[0][s]}")
    A("s_cmp_eq_u32 s22, 1"); A("s_cselect_b64 s[64:65], -1, 0")
    for i in range(4):
        A(f"v_add_u32 v1, {4*i}, v53"); A(f"v_add_u32 v3, {4*(i&1)}, v53"); A("v_lshlrev_b32 v3, 1, v3")
        A("v_cndmask_b32 v1, v1, v3, s[64:65]"); A("v_xor_b32 v1, v1, v52"); A("v_lshlrev_b32 v1, 4, v1")
        A(f"v_lshl_add_u32 v{vKVd[i]}, v53, 8, v1")
    for i in range(180): A(f"v_accvgpr_write_b32 a{i}, 0")
    def dmaKV_static(blk):
        g = []
        for hf in range(2):
            g.append([f"s_add_u32 m0, s62, {(blk%4)*32768+hf*4096}", f"s_mov_b32 s31, {blk*8192+hf*4096}",
                      f"buffer_load_dwordx4 v{vKVd[0]}, s[12:15], s31 offen{nt(c.ntKV)} lds"])
            for i in range(1, 4): g.append([f"buffer_load_dwordx4 v{vKVd[i]}, s[12:15], s31 offen offset:{1024*i}{nt(c.ntKV)} lds"])
        return g
    def rdQ(s):
        o = []
        xs = [f"ds_read_b128 {vr(XF[s%2]+4*qt,4)}, v{vX[s%2]} offset:{((s//2)%2)*20480+qt*2048}" for qt in range(5)]
        ws_ = []
        for dt in range(8):
            for j2 in range(2):
                ws_.append(f"ds_read_b64_tr_b16 {ar(WF[s%2]+4*dt+2*j2,2)}, v{vW[dt]} offset:{(s%3)*16384+j2*2048}")
        return xs + ws_
    A("s_waitcnt vmcnt(13)"); A("s_barrier")
    L += rdQ(0)
    A("s_waitcnt lgkmcnt(0)"); A("s_waitcnt vmcnt(9)"); A("s_barrier")
    for s in range(32):
        mf = []
        for dt in range(8):
            for qt in range(5):
                d = vr(ACC + (qt*8+dt)*4, 4)
                mf.append(f"v_mfma_f32_16x16x32_bf16 {d}, {ar(WF[s%2]+4*dt,4)}, {vr(XF[s%2]+4*qt,4)}, {d if s else 0}")
        dm = []
        if s % 2 == 1 and (s-1)//2 + 2 < 16: dm += dmaX((s-1)//2 + 2); issued += [f'X{(s-1)//2+2}']*5
        if s + 3 < 32: dm += dmaW(s + 3); issued += [f'W{s+3}']*4
        if s == c.kv_pf_step: dm += dmaKV_static(0); issued += ['KV0']*8
        if s == c.kv_pf_step + 1: dm += dmaKV_static(1); issued += ['KV1']*8
        fill = spread(dm, 40, 0, 36)
        if s + 1 < 32: spread(rdQ(s + 1), 40, 1, 30, fill)
        L += interleave(mf, fill)
        if s < 31:
            A("s_waitcnt lgkmcnt(0)")
            if s + 2 < 32: A(f"s_waitcnt vmcnt({vm_after([f'W{s+2}', f'X{(s+2)//2}'])})")
            A("s_barrier")
    nextra = c.D
    for blk in range(2, c.D + 1): L += flat(dmaKV_static(blk)); issued += [f'KV{blk}']*8
    npost = 8 * max(0, c.D - 1)
    A(f"s_mov_b32 s66, {QSCALE}"); A(f"s_mov_b32 s67, {QSCALE}")
    A("s_nop 4")
    for qt in range(5):
        for s in range(4):
            src = ACC + (qt*4+s)*8; dst = QF + (qt*4+s)*4
            for i in range(4): A(f"v_pk_mul_f32 {vr(src+2*i,2)}, {vr(src+2*i,2)}, s[66:67]")
            for i in range(4): A(f"v_cvt_pk_bf16_f32 v{dst+i}, v{src+2*i}, v{src+2*i+1}")
    A("s_nop 1")
    for f in range(20):
        dst = QF + f*4
        A(f"v_permlane16_swap_b32 v{dst}, v{dst+2}"); A(f"v_permlane16_swap_b32 v{dst+1}, v{dst+3}")
    if c.dumpq:
        for qt in range(5):
            A(f"s_mov_b32 s31, {qt*131072}")
            for s in range(4):
                A(f"buffer_store_dwordx4 {vr(QF+(qt*4+s)*4,4)}, v{vO}, s[16:19], s31 offen offset:{s*1024}")
    if c.mid_stamp:
        L += stamp_end(2, va=240); L += stamp_start()
    if not c.skip_attn:
        for i in range(4): A(f"v_mov_b32 v{ONES+i}, 0x3f803f80")
        for i in range(8): A(f"v_mov_b32 v{SB[3]+i}, 0xff800000")
        for i in range(4): A(f"v_mov_b32 v{SB[2]+i}, 0")
        for i in range(32): A(f"v_accvgpr_write_b32 a{VF[1]+i}, 0")
        def rdK(slot, buf):
            return [f"ds_read_b128 {vr(KF[buf]+(kt*4+s)*4,4)}, v{vK[slot>>1][s]} offset:{(slot&1)*32768+kt*4096}" for kt in range(2) for s in range(4)]
        def rdV(slot, buf):
            return [f"ds_read_b64_tr_b16 {ar(VF[buf]+dt*4+2*j2,2)}, v{vV[slot>>1][dt]} offset:{(slot&1)*32768+j2*4096}" for dt in range(8) for j2 in range(2)]
        if c.dumpq: issued += ['st']*20
        if c.mid_stamp: A("s_waitcnt vmcnt(0)")
        else: A(f"s_waitcnt vmcnt({vm_after(['KV0'])})")
        A("s_barrier")
        L += rdK(0, 0); L += rdV(0, 0)
        A("s_waitcnt lgkmcnt(0)"); A(f"s_waitcnt vmcnt({vm_after(['KV1'])})"); A("s_barrier")
        A(f"s_mov_b32 s31, {(1+c.D)*8192}")
        A("s_mov_b32 s68, 0")
        def QK(u, kbuf):
            qt = u % 5; sb = SB[u % 4]; o = []
            for kt in range(2):
                for s in range(4):
                    d = vr(sb+4*kt, 4)
                    o.append(f"v_mfma_f32_16x16x32_bf16 {d}, {vr(KF[kbuf]+(kt*4+s)*4,4)}, {vr(QF+(qt*4+s)*4,4)}, {d if s else 0}")
            return o
        def PV(u, vbuf):
            qt = u % 5; sb = SB[u % 4]; o = []
            for dt in range(8):
                d = ar(OA+(qt*8+dt)*4, 4)
                o.append(f"v_mfma_f32_16x16x32_bf16 {d}, {ar(VF[vbuf]+dt*4,4)}, {vr(sb,4)}, {d}")
            d = ar(LA+qt*4, 4)
            o.append(f"v_mfma_f32_16x16x32_bf16 {d}, {vr(ONES,4)}, {vr(sb,4)}, {d}")
            return o
        def SM(u):
            sb = SB[u % 4]
            e = [f"v_exp_f32 v{sb+i}, v{sb+i}" for i in range(8)]
            cv = [f"v_cvt_pk_bf16_f32 v{sb+i}, v{sb+2*i}, v{sb+2*i+1}" for i in range(4)]
            return e, cv
        body = []
        for B in range(4):
            slotn = (B + 1) % 4
            dslot = (B + 1 + c.D) % 4
            dm = []
            for hf in range(2):
                dm.append([f"s_add_u32 m0, s62, {dslot*32768+hf*4096}", "s_nop 0",
                           f"buffer_load_dwordx4 v{vKVd[0]}, s[12:15], s31 offen{nt(c.ntKV)} lds"])
                for i in range(1, 4): dm.append([f"buffer_load_dwordx4 v{vKVd[i]}, s[12:15], s31 offen offset:{1024*i}{nt(c.ntKV)} lds"])
                dm[-1].append("s_add_u32 s31, s31, 4096")
            kr = rdK(slotn, (B+1) % 2); vrd = rdV(slotn, (B+1) % 2)
            for q in range(5):
                u = 20 + 5*B + q
                qk = QK(u, B % 2)
                up = u - 2
                pv = PV(up, (up // 5) % 2)
                e, cv = SM(u - 1)
                mf = []
                for i in range(8): mf += [qk[i], pv[i]]
                mf.append(pv[8])
                fill = {}
                epos = [2, 4, 5, 7, 9, 10, 12, 13]
                cpos = [6, 8, 12, 15]
                for i in range(8): fill.setdefault(epos[i], []).append(e[i])
                for i in range(4): fill.setdefault(cpos[i], []).insert(0, cv[i]) if False else fill.setdefault(cpos[i], []).append(cv[i])
                free = [0, 1, 3, 11, 14, 16, 6, 8]
                oth = []
                if q == 0: oth = dm[0:4] + [[x] for x in kr[0:2]]
                if q == 1: oth = dm[4:8] + [[x] for x in kr[2:4]]
                if q == 2: oth = [[x] for x in kr[4:8]] + [vrd[0:2], vrd[2:4]]
                if q == 3: oth = [vrd[4:6], vrd[6:8], vrd[8:10], vrd[10:12]]
                if q == 4: oth = [vrd[12:14], vrd[14:16]]
                fr = sorted(free[:len(oth)])
                for gp, pos in zip(oth, fr): fill.setdefault(pos, []).extend(gp)
                body += interleave(mf, fill)
            body += ["s_waitcnt lgkmcnt(0)", f"s_waitcnt vmcnt({8*(c.D-1)})", "s_barrier"]
        A("L_attn_loop:")
        L += body
        A("s_add_u32 s68, s68, 1"); A("s_cmp_lt_u32 s68, 8"); A("s_cbranch_scc1 L_attn_loop")
        for pb in check_hazards(body + body, "attn-loop"): print(pb)
        e, cv = SM(39)
        pv = PV(38, 1)
        fill = {}
        for i in range(8): fill.setdefault(i, []).append(e[i])
        L += interleave(pv, fill); L += cv; A("s_nop 1")
        L += PV(39, 1)
        A("s_nop 7")
        for qt in range(5):
            A(f"v_accvgpr_read_b32 v{T[0]}, a{LA+4*qt}")
            A(f"v_rcp_f32 v{T[0]}, v{T[0]}")
            A(f"s_mov_b32 s31, {qt*131072}")
            for s in range(4):
                base = 176 + ((qt*4+s) % 4) * 8
                for i in range(8): A(f"v_accvgpr_read_b32 v{base+i}, a{OA+(qt*8+2*s)*4+i}")
                for i in range(4): A(f"v_pk_mul_f32 {vr(base+2*i,2)}, {vr(base+2*i,2)}, {vr(T[0],2)} op_sel_hi:[1,0]")
                dst = 208 + ((qt*4+s) % 8) * 4
                for i in range(4): A(f"v_cvt_pk_bf16_f32 v{dst+i}, v{base+2*i}, v{base+2*i+1}")
                if not c.dumpq:
                    A(f"buffer_store_dwordx4 {vr(dst,4)}, v{vO}, s[16:19], s31 offen offset:{s*1024}{c.oStore}")
    if c.stamps: L += stamp_end(0, va=240)
    A("L_k1_end:"); A("s_endpgm")
    for pb in check_hazards(L, "k1"): print(pb)
    return L

def gen_k2(c):
    L = kbegin(K2); A = L.append
    nt = lambda b: " nt" if b else ""
    vV = list(range(4, 12)); vWd = list(range(12, 20)); vO = 20; vR = [21, 22, 23]; vRd = 24; vSt = 25
    BF = [64, 84, 104, 124]; AF = [192, 224]
    A("s_cmp_ge_u32 s2, 256"); A("s_cbranch_scc1 L_k2_end")
    if c.stamps: L += stamp_start()
    load_ptrs(A)
    A("v_lshrrev_b32 v1, 6, v0"); A("v_and_b32 v2, 63, v0"); A("v_readfirstlane_b32 s20, v1")
    A("s_and_b32 s23, s2, 7"); A("s_lshr_b32 s24, s2, 3"); A("s_lshr_b32 s25, s23, 2")
    A("s_lshr_b32 s26, s23, 1"); A("s_and_b32 s26, s26, 1"); A("s_lshl_b32 s26, s26, 3"); A("s_lshr_b32 s27, s24, 2"); A("s_add_u32 s26, s26, s27")
    A("s_and_b32 s27, s23, 1"); A("s_lshl_b32 s27, s27, 2"); A("s_and_b32 s28, s24, 3"); A("s_add_u32 s27, s27, s28")
    A("v_and_b32 v52, 15, v2"); A("v_lshrrev_b32 v53, 4, v2"); A("v_lshrrev_b32 v54, 2, v52"); A("v_and_b32 v55, 3, v2")
    for i in range(8):
        A(f"v_add_u32 v1, {4*i}, v53"); A("v_and_b32 v3, 7, v1"); A("v_lshlrev_b32 v3, 1, v3"); A("v_xor_b32 v3, v3, v52"); A("v_lshlrev_b32 v3, 4, v3")
        A(f"v_lshl_add_u32 v{vWd[i]}, v1, 11, v3")
        if i & 3: A(f"v_subrev_u32 v{vWd[i]}, {1024*(i&3)}, v{vWd[i]}")
    A(f"v_lshlrev_b32 v{vO}, 4, v2")
    A("s_waitcnt lgkmcnt(0)")
    A("s_cmp_eq_u32 s25, 1"); sel_ptr(A, 8, 4)
    A("s_lshl_b32 s28, s20, 21"); A("s_lshl_b32 s29, s27, 8"); A("s_add_u32 s28, s28, s29")
    A("s_add_u32 s8, s8, s28"); A("s_addc_u32 s9, s9, 0"); A(f"s_sub_u32 s10, {1024*2048}, s29"); A("s_mov_b32 s11, 0x20000")
    A("s_mul_i32 s28, s25, 80"); A("s_mul_i32 s29, s26, 5"); A("s_add_u32 s28, s28, s29"); A("s_lshl_b32 s28, s28, 17")
    A("s_lshl_b32 s29, s20, 15"); A("s_add_u32 s28, s28, s29")
    A("s_add_u32 s4, s54, s28"); A("s_addc_u32 s5, s55, 0"); A(f"s_mov_b32 s6, {4*131072+32768}"); A("s_mov_b32 s7, 0x20000")
    A("s_lshl_b32 s60, s20, 15")
    for qt in range(1, 5): A(f"s_mov_b32 s{70+qt}, {qt*131072}")
    def ld(n, dyn):
        g = []
        for hf in range(2):
            g.append([f"s_add_u32 m0, s60, {(n%4)*8192+hf*4096}", "s_nop 0",
                      f"buffer_load_dwordx4 v{vWd[4*hf]}, s[8:11], s30 offen{nt(c.ntWo)} lds"])
            for i in range(1, 4): g.append([f"buffer_load_dwordx4 v{vWd[4*hf+i]}, s[8:11], s30 offen offset:{1024*i}{nt(c.ntWo)} lds"])
        g[-1].append("s_add_u32 s30, s30, 0x10000")
        for qt in range(5):
            so = "0" if qt == 0 else f"s{70+qt}"
            g.append([f"buffer_load_dwordx4 {vr(BF[n%4]+4*qt,4)}, v26, s[4:7], {so} offen offset:{(n%4)*1024}{nt(c.ntO)}"])
        if n % 4 == 3: g[-1].append("v_add_u32 v26, 4096, v26")
        return g
    flat = lambda gs: [x for g in gs for x in g]
    A("s_mov_b32 s30, 0"); A(f"v_mov_b32 v26, v{vO}")
    for n in range(3): L += flat(ld(n, True))
    A("v_and_b32 v1, 1, v53"); A("v_lshl_or_b32 v1, v1, 2, v54")
    A("v_lshl_add_u32 v3, v53, 2, v54"); A("v_lshlrev_b32 v3, 8, v3"); A("v_lshl_add_u32 v3, v55, 3, v3"); A("v_add_u32 v3, s60, v3")
    for dt in range(8):
        A(f"s_lshl_b32 s28, s20, 1"); A(f"s_add_u32 s28, s28, {dt}"); A("s_and_b32 s28, s28, 7")
        A(f"v_xor_b32 v{vV[dt]}, s28, v1"); A(f"v_lshl_add_u32 v{vV[dt]}, v{vV[dt]}, 5, v3")
    for m in range(1, 4):
        A(f"s_add_u32 s28, s20, {m}"); A("s_and_b32 s28, s28, 3"); A(f"s_mul_i32 s28, s28, 30720"); A(f"s_add_u32 s28, s28, {(m-1)*10240}")
        A(f"v_add_u32 v{vR[m-1]}, s28, v{vO}")
    A("s_mul_i32 s28, s20, 30720"); A(f"v_add_u32 v{vRd}, s28, v{vO}")
    A(f"s_mul_i32 s28, s26, {80*4096}"); A("s_lshl_b32 s29, s25, 11"); A("s_add_u32 s28, s28, s29")
    A("s_lshl_b32 s29, s27, 8"); A("s_add_u32 s28, s28, s29"); A("s_lshl_b32 s29, s20, 6"); A("s_add_u32 s28, s28, s29")
    A("s_add_u32 s12, s52, s28"); A("s_addc_u32 s13, s53, 0"); A(f"s_mov_b32 s14, {79*4096+64}"); A("s_mov_b32 s15, 0x20000")
    A("v_lshrrev_b32 v1, 1, v53"); A("v_and_b32 v3, 1, v53"); A("v_lshl_or_b32 v1, v3, 1, v1"); A("v_lshlrev_b32 v1, 4, v1")
    A(f"v_lshl_add_u32 v{vSt}, v52, 12, v1")
    for i in range(160): A(f"v_accvgpr_write_b32 a{i}, 0")
    def rdA(n):
        return [f"ds_read_b64_tr_b16 {ar(AF[n%2]+dt*4+2*j2,2)}, v{vV[dt]} offset:{(n%4)*8192+j2*4096}" for dt in range(8) for j2 in range(2)]
    A("s_waitcnt vmcnt(26)")
    L += rdA(0)
    A("s_waitcnt lgkmcnt(0)"); A("s_waitcnt vmcnt(13)")
    A("s_mov_b32 s68, 0")
    body = []
    for n in range(4):
        mf = []
        for dt in range(8):
            for qt in range(5):
                d = ar((qt*8+dt)*4, 4)
                mf.append(f"v_mfma_f32_16x16x32_bf16 {d}, {ar(AF[n%2]+4*dt,4)}, {vr(BF[n%4]+4*qt,4)}, {d}")
        fill = spread(ld(n + 3, True), 40, 0, 38)
        spread(rdA(n + 1), 40, 1, 30, fill)
        body += interleave(mf, fill)
        body += ["s_waitcnt lgkmcnt(0)", "s_waitcnt vmcnt(13)"]
    A("L_k2_loop:")
    L += body
    A("s_add_u32 s68, s68, 1"); A("s_cmp_lt_u32 s68, 8"); A("s_cbranch_scc1 L_k2_loop")
    for pb in check_hazards(body + body, "k2-loop"): print(pb)
    A("s_waitcnt vmcnt(0)"); A("s_barrier")
    for m in range(1, 4):
        for qt in range(5):
            for e in range(2):
                A(f"ds_write_b128 v{vR[m-1]}, {ar((qt*8+2*m+e)*4,4)} offset:{(qt*2+e)*1024}")
    for qt in range(5):
        for i in range(8): A(f"v_accvgpr_read_b32 v{64+qt*8+i}, a{qt*32+i}")
    A("s_waitcnt lgkmcnt(0)"); A("s_barrier")
    for m in range(3):
        for t in range(10):
            A(f"ds_read_b128 {vr(112+(m*10+t)*4,4)}, v{vRd} offset:{m*10240+t*1024}")
    A("s_waitcnt lgkmcnt(0)")
    for m in range(3):
        for i in range(20): A(f"v_pk_add_f32 {vr(64+2*i,2)}, {vr(64+2*i,2)}, {vr(112+m*40+2*i,2)}")
    for qt in range(5):
        for i in range(4): A(f"v_cvt_pk_bf16_f32 v{28+qt*4+i}, v{64+qt*8+2*i}, v{64+qt*8+2*i+1}")
    A("s_nop 1")
    for qt in range(5):
        A(f"v_permlane16_swap_b32 v{28+qt*4}, v{28+qt*4+2}"); A(f"v_permlane16_swap_b32 v{28+qt*4+1}, v{28+qt*4+3}")
    for qt in range(5):
        A(f"s_mov_b32 s31, {qt*16*4096}")
        A(f"buffer_store_dwordx4 {vr(28+qt*4,4)}, v{vSt}, s[12:15], s31 offen")
    if c.stamps: L += stamp_end(1, va=240)
    A("L_k2_end:"); A("s_endpgm")
    for pb in check_hazards(L, "k2"): print(pb)
    return L

def build(c):
    L = header([(K1, 256, 256, 163840), (K2, 256, 256, 163840)])
    L += gen_k1(c); L += gen_k2(c)
    L += kdesc(K1, 512, 256); L += kdesc(K2, 512, 256)
    return "\n".join(L) + "\n"

if __name__ == "__main__":
    out = sys.argv[1]
    c = Cfg()
    for kv in sys.argv[2:]:
        k, v = kv.split("=")
        cur = getattr(c, k)
        setattr(c, k, (" " + v.replace("+", " ") if v else "") if isinstance(cur, str) else (bool(int(v)) if isinstance(cur, bool) else int(v)))
    open(out, "w").write(build(c))
```
